```python
import torch

def _softmax(x, axis=-1):
    return torch.softmax(x, dim=axis)

def _gelu(x):
    return torch.nn.functional.gelu(x, approximate='tanh')

def _silu(x):
    return torch.nn.functional.silu(x)

def _sigmoid(x):
    return torch.sigmoid(x)

def _layernorm(x, axis=-1, eps=1e-05):
    m = x.mean(dim=axis, keepdim=True)
    v = x.var(dim=axis, keepdim=True, unbiased=False)
    return (x - m) / torch.sqrt(v + eps)

def _scatter_add(tgt, idx, src, axis=0):
    return tgt.clone().index_add_(axis, idx, src)

def _segment_sum(src, seg, n):
    out = torch.zeros((n,) + src.shape[1:], dtype=src.dtype)
    return out.index_add_(0, seg, src)

def _pad(x, pw):
    flat = tuple((v for pair in reversed(pw) for v in pair))
    return torch.nn.functional.pad(x, flat)
kernel_name = 'standalone__swin_window_attn__vision'

def setup_inputs():

    _w = lambda a: (lambda t: t.to(torch.bfloat16) if t.is_floating_point() else t)(torch.as_tensor(a))
    H = W = 256 // 7 * 7
    C, win = (384, 7)
    return {'x': _w((lambda *s: torch.randn(*s, dtype=torch.bfloat16) * 0.2)(1, H, W, C)), 'wqkv': _w((lambda *s: torch.randn(*s, dtype=torch.bfloat16) * 0.2)(C, 3 * C)), 'wo': _w((lambda *s: torch.randn(*s, dtype=torch.bfloat16) * 0.05)(C, C))}

def reference(x, wqkv, wo):
    B, H, W, C = x.shape
    win = 7
    nh, nw = (H // win, W // win)
    xw = (lambda x, *d: x.permute(*d))(x.reshape(B, nh, win, nw, win, C), 0, 1, 3, 2, 4, 5)
    xw = xw.reshape(B * nh * nw, win * win, C)
    qkv = xw @ wqkv
    q, k, v = (qkv[..., :C].clone(), qkv[..., C:2 * C].clone(), qkv[..., 2 * C:].clone())
    scale = C ** (-0.5)
    p = _softmax(torch.einsum('bqc,bkc->bqk', q, k) * scale, axis=-1)
    o = torch.einsum('bqk,bkc->bqc', p, v) @ wo
    o = (lambda x, *d: x.permute(*d))(o.reshape(B, nh, nw, win, win, C), 0, 1, 3, 2, 4, 5)
    return o.reshape(B, H, W, C)
```

```python
import sys
HDR = '''; @launch grid=(256,1,1) block=(256,1,1) lds=98304
.amdgcn_target "amdgcn-amd-amdhsa--gfx950"
.text
.globl k_kernel
.p2align 8
.type k_kernel,@function
k_kernel:
s_cmp_ge_u32 s2, 256
s_cbranch_scc1 L_end
s_load_dwordx2 s[4:5], s[0:1], 40
s_load_dwordx2 s[6:7], s[0:1], 0
s_waitcnt lgkmcnt(0)
'''
TAIL = '''
s_memtime s[10:11]
s_memrealtime s[16:17]
s_waitcnt lgkmcnt(0)
s_sub_u32 s10, s10, s8
s_sub_u32 s16, s16, s14
v_lshrrev_b32 v1, 6, v0
s_lshl_b32 s3, s2, 2
v_add_u32 v1, s3, v1
v_lshlrev_b32 v1, 4, v1
v_mov_b32 v2, s10
v_mov_b32 v3, s16
v_mov_b32 v4, s14
v_mov_b32 v5, s8
global_store_dwordx4 v1, v[2:5], s[4:5]
s_waitcnt vmcnt(0)
L_end:
s_endpgm
.fill 256, 4, 0xbf800000
.section .rodata,"a"
.p2align 6
.amdhsa_kernel k_kernel
  .amdhsa_next_free_vgpr 512
  .amdhsa_next_free_sgpr 102
  .amdhsa_accum_offset 256
  .amdhsa_group_segment_fixed_size 0
  .amdhsa_kernarg_size 48
  .amdhsa_user_sgpr_count 2
  .amdhsa_user_sgpr_kernarg_segment_ptr 1
  .amdhsa_system_sgpr_workgroup_id_x 1
.end_amdhsa_kernel
'''
def gen(name, shape, iters, lds=True, dma=0, valu=0, barrier=False):
    L = [HDR]
    L.append('v_lshlrev_b32 v1, 4, v0')
    L.append('s_lshl_b32 s3, s2, 12\nv_add_u32 v2, s3, v1')
    for i in range(48):
        L.append(f'global_load_dwordx4 a[{4*i}:{4*i+3}], v2, s[6:7]')
        L.append('v_add_u32 v2, 0x100000, v2')
    L.append('s_waitcnt vmcnt(0)')
    L.append('v_mov_b32 v2, v1\nv_mov_b32 v3, v1')
    for i in range(24):
        L.append(f'global_load_dwordx4 v[8:11], v2, s[6:7]\nv_add_u32 v2, 4096, v2\ns_waitcnt vmcnt(0)\nds_write_b128 v3, v[8:11]\nv_add_u32 v3, 4096, v3')
    for i in range(0, 128): L.append(f'v_mov_b32 v{i+64}, 0')
    L.append('v_and_b32 v4, 63, v0\nv_lshlrev_b32 v4, 4, v4')
    L.append('s_mov_b32 s20, s6\ns_mov_b32 s21, s7\ns_mov_b32 s22, 0x1000000\ns_mov_b32 s23, 0x20000')
    L.append('v_lshrrev_b32 v5, 6, v0\ns_nop 0\nv_readfirstlane_b32 s24, v5\ns_nop 3\ns_mul_i32 s25, s24, 6144\ns_add_u32 s25, s25, 73728\ns_mov_b32 s26, 0')
    for i in range(6): L.append(f'ds_read_b128 v[{16+4*i}:{19+4*i}], v4 offset:{1024*i}')
    L.append('s_waitcnt lgkmcnt(0)\ns_barrier')
    L.append('s_memrealtime s[14:15]\ns_memtime s[8:9]\ns_waitcnt lgkmcnt(0)')
    L.append(f's_mov_b32 s12, {iters}\nL_loop:')
    nd = 0
    for f in range(24):
        fr = 16 + 4 * (f % 6)
        nxt = (f + 5) % 24
        if shape == 16:
            ks = f // 2; ct = f % 2
            for t in range(4):
                acc = 64 + (ct * 4 + t) * 4
                b = (t * 12 + ks) * 4
                if t == 0 and lds: L.append('s_waitcnt lgkmcnt(4)')
                L.append(f'v_mfma_f32_16x16x32_bf16 v[{acc}:{acc+3}], v[{fr}:{fr+3}], a[{b}:{b+3}], v[{acc}:{acc+3}]')
                if t == 0 and lds:
                    fn = 16 + 4 * ((f + 5) % 6)
                    L.append(f'ds_read_b128 v[{fn}:{fn+3}], v4 offset:{1024*nxt}')
                if t == 2 and dma and f % 4 == 1:
                    L.append(f's_add_u32 m0, s25, {1024*nd}'); L.append('s_add_u32 s26, s26, 1024')
                    L.append('buffer_load_dwordx4 v1, s[20:23], s26 offen lds'); nd += 1
                if t in (1, 3):
                    for e in range(valu): L.append(f'v_cvt_pk_bf16_f32 v{200+e}, v{210+e}, v{220+e}')
        else:
            for t in range(2):
                acc = 64 + t * 16
                b = (t * 24 + f) * 4
                if t == 0 and lds: L.append('s_waitcnt lgkmcnt(4)')
                L.append(f'v_mfma_f32_32x32x16_bf16 v[{acc}:{acc+15}], v[{fr}:{fr+3}], a[{b}:{b+3}], v[{acc}:{acc+15}]')
                if t == 0 and lds:
                    fn = 16 + 4 * ((f + 5) % 6)
                    L.append(f'ds_read_b128 v[{fn}:{fn+3}], v4 offset:{1024*nxt}')
                if t == 1 and dma and f % 4 == 1:
                    L.append(f's_add_u32 m0, s25, {1024*nd}'); L.append('s_add_u32 s26, s26, 1024')
                    L.append('buffer_load_dwordx4 v1, s[20:23], s26 offen lds'); nd += 1
                for e in range(valu): L.append(f'v_cvt_pk_bf16_f32 v{200+e}, v{210+e}, v{220+e}')
    if dma: L.append('s_and_b32 s26, s26, 0x7ffff\ns_waitcnt vmcnt(6)')
    if barrier: L.append('s_barrier')
    L.append('s_sub_u32 s12, s12, 1\ns_cmp_lg_u32 s12, 0\ns_cbranch_scc1 L_loop')
    L.append('s_waitcnt vmcnt(0) lgkmcnt(0)')
    L.append(TAIL)
    open(name, 'w').write('\n'.join(L) + '\n')
it = 30
gen('clk16_nolds.s', 16, it, lds=False)
gen('clk32_nolds.s', 32, it, lds=False)
gen('clk16.s', 16, it)
gen('clk32.s', 32, it)
gen('clk16_dma.s', 16, it, dma=1)
gen('clk32_dma.s', 32, it, dma=1)
gen('clk16_dma_bar.s', 16, it, dma=1, barrier=True)
gen('clk32_dma_bar.s', 32, it, dma=1, barrier=True)
gen('clk16_all.s', 16, it, dma=1, barrier=True, valu=1)
gen('clk32_all.s', 32, it, dma=1, barrier=True, valu=1)
```

```python
from mb_clk import HDR, TAIL
def gen(name, kind, every=16, iters=30):
    L = [HDR]
    L.append('v_lshlrev_b32 v1, 4, v0')
    for i in range(0, 128): L.append(f'v_mov_b32 v{i+64}, 0')
    for i in range(8, 40): L.append(f'v_mov_b32 v{i}, 0')
    L.append('v_and_b32 v4, 63, v0\nv_lshlrev_b32 v4, 4, v4')
    L.append('s_mov_b32 s20, s6\ns_mov_b32 s21, s7\ns_mov_b32 s22, 0x1000000\ns_mov_b32 s23, 0x20000')
    L.append('s_add_u32 s28, s4, 0x100000\ns_addc_u32 s29, s5, 0\ns_mov_b32 s30, 0x4000000\ns_mov_b32 s31, 0x20000')
    L.append('v_lshrrev_b32 v5, 6, v0\ns_nop 0\nv_readfirstlane_b32 s24, v5\ns_nop 3\ns_mul_i32 s25, s24, 6144\ns_mov_b32 s26, 0\ns_mov_b32 m0, s25')
    L.append('v_and_b32 v6, 15, v0\nv_mul_u32_u24 v6, 768, v6\nv_bfe_u32 v7, v0, 4, 2\nv_lshlrev_b32 v7, 4, v7\nv_add_u32 v6, v6, v7')
    L.append('s_lshl_b32 s3, s2, 2\ns_add_u32 s3, s3, s24\ns_mul_i32 s3, s3, 49152\nv_add_u32 v6, s3, v6')
    L.append('s_barrier')
    L.append('s_memrealtime s[14:15]\ns_memtime s[8:9]\ns_waitcnt lgkmcnt(0)')
    L.append(f's_mov_b32 s12, {iters}\nL_loop:')
    n = 0
    for f in range(96):
        acc = 64 + (f // 2 % 8) * 4
        L.append(f'v_mfma_f32_16x16x32_bf16 v[{acc}:{acc+3}], v[8:11], v[12:15], v[{acc}:{acc+3}]')
        if f % every == 3 % every:
            o = (n % 4) * 1024
            if kind == 'dma': L.append(f'buffer_load_dwordx4 v1, s[20:23], s26 offen offset:{o} lds')
            elif kind == 'ld': L.append(f'buffer_load_dwordx4 v[{16+4*(n%6)}:{19+4*(n%6)}], v1, s[20:23], s26 offen offset:{o}')
            elif kind == 'lda': L.append(f'buffer_load_dwordx4 a[{16+4*(n%6)}:{19+4*(n%6)}], v1, s[20:23], s26 offen offset:{o}')
            elif kind == 'gld': L.append(f'global_load_dwordx4 v[{16+4*(n%6)}:{19+4*(n%6)}], v1, s[6:7] offset:{o}')
            elif kind == 'gdma': L.append(f'global_load_lds_dwordx4 v1, s[6:7] offset:{o}')
            elif kind == 'gdmasc': L.append(f'global_load_lds_dwordx4 v1, s[6:7] offset:{o} sc1')
            elif kind == 'gst': L.append(f'global_store_dwordx4 v6, v[16:19], s[28:29] offset:{64*(n%12)}')
            elif kind == 'st2': L.append(f'buffer_store_dwordx2 v[16:17], v6, s[28:31], 0 offen offset:{64*(n%12)}')
            elif kind == 'gdma+v': L.append(f'global_load_lds_dwordx4 v1, s[6:7] offset:{o}\nv_cvt_pk_bf16_f32 v40, v41, v42')
            elif kind == 'v+gdma': L.append(f'v_cvt_pk_bf16_f32 v40, v41, v42\nglobal_load_lds_dwordx4 v1, s[6:7] offset:{o}')
            elif kind == 'dsr+v': L.append(f'ds_read_b128 v[{16+4*(n%6)}:{19+4*(n%6)}], v4 offset:{o}\nv_cvt_pk_bf16_f32 v40, v41, v42')
            elif kind == 'tr2': L.append(f'ds_read_b64_tr_b16 v[16:17], v4 offset:{o}\nds_read_b64_tr_b16 v[18:19], v4 offset:{o+4096}')
            elif kind == 'exp+v': L.append('v_exp_f32 v40, v41\nv_add_f32 v42, v41, v41')
            elif kind == 'max3x2': L.append('v_max3_f32 v40, v41, v42, v43\nv_max3_f32 v44, v41, v42, v43')
            elif kind == 'dep2': L.append('v_add_f32 v40, v40, v42\nv_add_f32 v40, v40, v43')
            elif kind == 'dot1': L.append('v_dot2_f32_bf16 v40, v41, v42, v40')
            elif kind == 'dot2': L.append('v_dot2_f32_bf16 v40, v41, v42, v40\nv_dot2_f32_bf16 v44, v41, v42, v44')
            elif kind == 'dotc1': L.append('v_dot2c_f32_bf16 v40, v41, v42')
            elif kind == 'dotc2': L.append('v_dot2c_f32_bf16 v40, v41, v42\nv_dot2c_f32_bf16 v44, v41, v42')
            elif kind == 'pkmul1': L.append('v_pk_mul_f32 v[40:41], v[42:43], v[44:45]')
            elif kind == 'pkmul2': L.append('v_pk_mul_f32 v[40:41], v[42:43], v[44:45]\nv_pk_mul_f32 v[46:47], v[42:43], v[44:45]')
            elif kind == 'pkadd1': L.append('v_pk_add_f32 v[40:41], v[42:43], v[44:45]')
            elif kind == 'fma2': L.append('v_fma_f32 v40, v40, s20, -v42\nv_fma_f32 v44, v44, s20, -v42')
            elif kind == 'mul2': L.append('v_mul_f32 v40, v40, v42\nv_mul_f32 v44, v44, v42')
            elif kind == 'fe': L.append('v_exp_f32 v40, v40' if n % 2 else 'v_fma_f32 v40, v40, s20, -v42\nv_add_f32 v45, v45, v46')
            elif kind == 'cnd2': L.append('v_cndmask_b32 v40, v41, v40, s[22:23]\nv_cndmask_b32 v44, v41, v44, s[22:23]')
            elif kind == 'dd': L.append(f'ds_read_b128 v[16:19], v4 offset:{o}\nds_read_b128 v[20:23], v4 offset:{o+4096}')
            elif kind == 'dv': L.append(f'ds_read_b128 v[16:19], v4 offset:{o}\nv_mul_f32 v40, v40, v42')
            elif kind == 'cvtm': L.append('v_cvt_pk_bf16_f32 v40, v64, v65\nv_cvt_pk_bf16_f32 v43, v66, v67')
            elif kind == 'st': L.append(f'buffer_store_dwordx4 v[16:19], v6, s[28:31], 0 offen offset:{64*(n%12)}')
            elif kind == 'stlin': L.append(f'buffer_store_dwordx4 v[16:19], v1, s[28:31], s3 offen offset:{o}')
            elif kind == 'dsw': L.append(f'ds_write_b128 v4, v[16:19] offset:{o}')
            elif kind == 'dsw64': L.append(f'ds_write_b64 v4, v[16:17] offset:{o}')
            elif kind == 'dsr': L.append(f'ds_read_b128 v[{16+4*(n%6)}:{19+4*(n%6)}], v4 offset:{o}')
            elif kind == 'dma+1': L.append(f's_add_u32 m0, s25, 0\nbuffer_load_dwordx4 v1, s[20:23], s26 offen offset:{o} lds')
            elif kind == 'bar': L.append('s_barrier')
            elif kind == 'exp2': L.append('v_exp_f32 v40, v41\nv_exp_f32 v42, v41')
            elif kind == 'exp1': L.append('v_exp_f32 v40, v41')
            elif kind == 'cvt2': L.append('v_cvt_pk_bf16_f32 v40, v41, v42\nv_cvt_pk_bf16_f32 v43, v41, v42')
            elif kind == 'cvt3': L.append('v_cvt_pk_bf16_f32 v40, v41, v42\nv_cvt_pk_bf16_f32 v43, v41, v42\nv_cvt_pk_bf16_f32 v44, v41, v42')
            elif kind == 'perm': L.append('v_permlane32_swap_b32 v40, v41')
            elif kind == 'dsr+w': L.append(f's_waitcnt lgkmcnt(2)\nds_read_b128 v[{16+4*(n%6)}:{19+4*(n%6)}], v4 offset:{o}')
            elif kind == 'dsr2': L.append(f'ds_read_b128 v[16:19], v4 offset:{o}\nds_read_b128 v[20:23], v4 offset:{o+4096}')
            n += 1
    L.append('s_waitcnt vmcnt(8)')
    L.append('s_sub_u32 s12, s12, 1\ns_cmp_lg_u32 s12, 0\ns_cbranch_scc1 L_loop')
    L.append('s_waitcnt vmcnt(0) lgkmcnt(0)')
    L.append(TAIL)
    open(name, 'w').write('\n'.join(L) + '\n')
names = []
for k, ev in [('none', 1), ('fma2', 1), ('mul2', 1), ('fe', 1), ('cnd2', 1), ('dd', 1), ('dv', 1), ('cvt2', 1), ('exp1', 1), ('max3x2', 1)]:
    nm = 'vm_' + k + '.s'
    gen(nm, k, every=ev); names.append(nm)
print(' '.join(names))
```
